```python
import torch

def _softmax(x, axis=-1):
    return torch.softmax(x, dim=axis)
def _gelu(x):
    return torch.nn.functional.gelu(x, approximate="tanh")
def _silu(x):
    return torch.nn.functional.silu(x)
def _sigmoid(x):
    return torch.sigmoid(x)
def _layernorm(x, axis=-1, eps=1e-5):
    m = x.mean(dim=axis, keepdim=True)
    v = x.var(dim=axis, keepdim=True, unbiased=False)
    return (x - m) / torch.sqrt(v + eps)
def _scatter_add(tgt, idx, src, axis=0):
    return tgt.clone().index_add_(axis, idx, src)
def _segment_sum(src, seg, n):
    out = torch.zeros((n,) + src.shape[1:], dtype=src.dtype)
    return out.index_add_(0, seg, src)
def _pad(x, pw):
    flat = tuple(v for pair in reversed(pw) for v in pair)
    return torch.nn.functional.pad(x, flat)

kernel_name = 'standalone__gqa_softmax__sampling'

def setup_inputs():

    _w = (lambda a: (lambda t: t.to(torch.bfloat16) if t.is_floating_point() else t)(torch.as_tensor(a)))
    B, Hq, Hkv, Sq, Sk, D = 8, 32, 8, 1, 2048, 128
    return {
        "q": _w((lambda *s: torch.randn(*s, dtype=torch.bfloat16) * 0.8)(B, Hq, Sq, D)),
        "k": _w((lambda *s: torch.randn(*s, dtype=torch.bfloat16) * 0.8)(B, Hkv, Sk, D)),
        "v": _w((lambda *s: torch.randn(*s, dtype=torch.bfloat16) * 0.05)(B, Hkv, Sk, D)),
    }

def reference(q, k, v):
    B, Hq, Sq, D = q.shape
    Hkv = k.shape[1]
    rep = Hq // Hkv
    k = (lambda x, n, axis: torch.repeat_interleave(x, n, dim=axis))(k, rep, axis=1)
    v = (lambda x, n, axis: torch.repeat_interleave(x, n, dim=axis))(v, rep, axis=1)
    scale = D ** -0.5
    scores = torch.einsum("bhqd,bhkd->bhqk", q, k) * scale
    p = _softmax(scores, axis=-1)
    return torch.einsum("bhqk,bhkd->bhqd", p, v)
```

```python
import sys, math, struct

def f2u(x): return struct.unpack('<I', struct.pack('<f', x))[0]

HEADER = """; Kernarg layout for this problem (48 bytes, ptrs only, base s[0:1]):
"""
NAME = "standalone__gqa_softmax__sampling_kernel"

def gen(ldflags="", kflags=None, vflags=None):
    if kflags is None: kflags = ldflags
    if vflags is None: vflags = ldflags
    o = []
    e = o.append
    LDS_STAT = 16384
    LDS = LDS_STAT + 256
    Q, S, K, V = 8, 24, 40, 104
    PM, VT, ACC = 40, 72, 8
    c = (128 ** -0.5) * math.log2(math.e)
    e(HEADER.rstrip())
    e(f"; @launch grid=(256,1,1) block=(512,1,1) lds={LDS}")
    e('.amdgcn_target "amdgcn-amd-amdhsa--gfx950"')
    e(".text")
    e(f".globl {NAME}")
    e(".p2align 8")
    e(f".type {NAME},@function")
    e(f"{NAME}:")
    e("  s_load_dwordx2 s[4:5], s[0:1], 0")
    e("  s_load_dwordx2 s[8:9], s[0:1], 8")
    e("  s_load_dwordx2 s[12:13], s[0:1], 16")
    e("  s_load_dwordx2 s[16:17], s[0:1], 24")
    e("  s_load_dwordx2 s[20:21], s[0:1], 32")
    e("  s_load_dwordx2 s[24:25], s[0:1], 40")
    e("  s_cmp_ge_u32 s2, 256")
    e("  s_cbranch_scc1 L_end")
    e("  s_and_b32 s32, s2, 63")
    e("  s_lshr_b32 s33, s2, 6")
    e("  s_lshl_b32 s28, s32, 19")
    e("  s_lshl_b32 s3, s33, 17")
    e("  s_add_u32 s28, s28, s3")
    e("  s_add_u32 s29, s28, 0x1000")
    e("  s_add_u32 s30, s28, 0x2000")
    e("  s_add_u32 s31, s28, 0x3000")
    e("  s_lshl_b32 s34, s32, 10")
    e("  s_mov_b32 s6, 0x10000")
    e("  s_mov_b32 s7, 0x20000")
    e("  s_mov_b32 s10, 0x2000000")
    e("  s_mov_b32 s11, 0x20000")
    e("  s_mov_b32 s14, 0x2000000")
    e("  s_mov_b32 s15, 0x20000")
    e("  v_and_b32 v3, 3, v0")
    e("  v_bfe_u32 v5, v0, 2, 2")
    e("  v_lshl_add_u32 v4, v3, 2, v5")
    e("  v_bfe_u32 v5, v0, 4, 2")
    e("  v_lshlrev_b32 v5, 4, v5")
    e("  v_lshl_add_u32 v1, v4, 8, v5")
    e("  v_lshrrev_b32 v6, 6, v0")
    e("  v_lshl_add_u32 v1, v6, 14, v1")
    e("  v_lshl_add_u32 v3, v3, 8, v5")
    e("  v_and_b32 v7, 63, v0")
    e("  v_lshlrev_b32 v7, 4, v7")
    e("  v_lshl_add_u32 v2, v6, 14, v7")
    e("  s_waitcnt lgkmcnt(0)")
    for s in range(4):
        e(f"  buffer_load_dwordx4 v[{Q+4*s}:{Q+4*s+3}], v3, s[4:7], s34 offen offset:{64*s}")
    for T in range(4):
        for s in range(4):
            r = K + (T*4+s)*4
            e(f"  buffer_load_dwordx4 v[{r}:{r+3}], v1, s[8:11], s{28+T} offen offset:{64*s} {kflags}".rstrip())
    for i in range(16):
        r = V + i*4
        e(f"  buffer_load_dwordx4 v[{r}:{r+3}], v2, s[12:15], s{28+i//4} offen offset:{1024*(i%4)} {vflags}".rstrip())
    e("  s_mov_b32 s18, 0x10000")
    e("  s_mov_b32 s19, 0x20000")
    e("  s_mov_b32 s22, 0x100")
    e("  s_mov_b32 s23, 0x20000")
    e("  s_mov_b32 s26, 0x100000")
    e("  s_mov_b32 s27, 0x20000")
    e(f"  s_mov_b32 s35, {f2u(c):#x}")
    e("  s_mov_b32 s36, 0x05040100")
    e("  s_mov_b32 s37, 0x07060302")
    for jj in range(4):
        m = (0x000F000F << (4*jj))
        e(f"  s_mov_b32 s{38+2*jj}, {m:#x}")
        e(f"  s_mov_b32 s{39+2*jj}, {m:#x}")
    e("  v_readfirstlane_b32 s48, v6")
    e("  s_lshl_b32 s47, s32, 14")
    e("  s_lshl_b32 s46, s33, 12")
    e("  s_add_u32 s46, s46, s47")
    e("  v_and_b32 v4, 3, v0")
    e("  v_lshlrev_b32 v4, 6, v4")
    e(f"  v_add_u32 v2, {LDS_STAT}, v4")
    e("  v_lshl_add_u32 v3, v6, 3, v2")
    e("  v_lshl_add_u32 v1, v6, 11, v7")
    for T in range(4):
        e(f"  s_waitcnt vmcnt({28-4*T})")
        for s in range(4):
            r = K + (T*4+s)*4
            cc = "0" if s == 0 else f"v[{S+4*T}:{S+4*T+3}]"
            e(f"  v_mfma_f32_16x16x32_bf16 v[{S+4*T}:{S+4*T+3}], v[{r}:{r+3}], v[{Q+4*s}:{Q+4*s+3}], {cc}")
    e("  s_nop 7")
    e(f"  v_max3_f32 v4, v{S}, v{S+1}, v{S+2}")
    for i in range(6):
        e(f"  v_max3_f32 v4, v4, v{S+3+2*i}, v{S+4+2*i}")
    e(f"  v_max_f32 v4, v4, v{S+15}")
    for sw in ("16", "32"):
        e("  v_mov_b32 v5, v4")
        e("  s_nop 1")
        e(f"  v_permlane{sw}_swap_b32 v5, v4")
        e("  v_max_f32 v4, v4, v5")
    e("  v_mul_f32 v4, s35, v4")
    for i in range(16):
        e(f"  v_fma_f32 v{S+i}, v{S+i}, s35, -v4")
    for i in range(16):
        e(f"  v_exp_f32 v{S+i}, v{S+i}")
    e("  s_nop 0")
    e(f"  v_add_f32 v5, v{S}, v{S+1}")
    e(f"  v_add_f32 v6, v{S+2}, v{S+3}")
    for i in range(4, 16, 2):
        e(f"  v_add_f32 v5, v5, v{S+i}")
        e(f"  v_add_f32 v6, v6, v{S+i+1}")
    e("  v_add_f32 v5, v5, v6")
    for sw in ("16", "32"):
        e("  v_mov_b32 v6, v5")
        e("  s_nop 1")
        e(f"  v_permlane{sw}_swap_b32 v6, v5")
        e("  v_add_f32 v5, v5, v6")
    e("  s_mov_b64 exec, 0xf")
    e("  ds_write_b64 v3, v[4:5]")
    e("  s_mov_b64 exec, -1")
    e("  s_waitcnt lgkmcnt(0)")
    e("  s_barrier")
    ST = 72
    for i in range(4):
        e(f"  ds_read_b128 v[{ST+4*i}:{ST+4*i+3}], v2 offset:{16*i}")
    e("  s_waitcnt lgkmcnt(0)")
    e(f"  v_max3_f32 v16, v{ST}, v{ST+2}, v{ST+4}")
    e(f"  v_max3_f32 v16, v16, v{ST+6}, v{ST+8}")
    e(f"  v_max3_f32 v16, v16, v{ST+10}, v{ST+12}")
    e(f"  v_max_f32 v16, v16, v{ST+14}")
    e("  v_sub_f32 v4, v4, v16")
    for w in range(8):
        e(f"  v_sub_f32 v{ST+2*w}, v{ST+2*w}, v16")
    e("  v_exp_f32 v4, v4")
    for w in range(8):
        e(f"  v_exp_f32 v{ST+2*w}, v{ST+2*w}")
    for i in range(16):
        e(f"  v_mul_f32 v{S+i}, v4, v{S+i}")
    e(f"  v_mul_f32 v17, v{ST}, v{ST+1}")
    for w in range(1, 8):
        e(f"  v_fmac_f32 v17, v{ST+2*w}, v{ST+2*w+1}")
    for i in range(8):
        e(f"  v_cvt_pk_bf16_f32 v{S+i}, v{S+2*i}, v{S+2*i+1}")
    for u in range(2):
        for jj in range(4):
            for y in range(4):
                e(f"  v_cndmask_b32 v{PM+(u*4+jj)*4+y}, 0, v{S+u*4+y}, s[{38+2*jj}:{39+2*jj}]")
    for u in range(2):
        for y in range(4):
            e(f"  s_waitcnt vmcnt({14-8*u-2*y})")
            perms = []
            for x in range(4):
                for ee in range(2):
                    a = V + (8*u+2*y+1)*4 + x
                    b = V + (8*u+2*y)*4 + x
                    perms.append(f"  v_perm_b32 v{VT+(x*2+ee)*4+y}, v{a}, v{b}, s{36+ee}")
            if y < 3:
                o.extend(perms)
            else:
                mf = []
                for x in range(4):
                    for ee in range(2):
                        d = ACC + 4*ee
                        cc = "0" if (u == 0 and x == 0) else f"v[{d}:{d+3}]"
                        a = PM + (u*4+x)*4
                        b = VT + (x*2+ee)*4
                        mf.append(f"  v_mfma_f32_16x16x32_bf16 v[{d}:{d+3}], v[{a}:{a+3}], v[{b}:{b+3}], {cc}")
                seq = perms[:3]
                for i in range(8):
                    seq.append(mf[i])
                    if 3+i < 8: seq.append(perms[3+i])
                o.extend(seq)
    e("  s_nop 6")
    e(f"  ds_write_b128 v1, v[{ACC}:{ACC+3}]")
    e(f"  ds_write_b128 v1, v[{ACC+4}:{ACC+7}] offset:1024")
    e("  s_waitcnt lgkmcnt(0)")
    e("  s_barrier")
    e("  s_cmp_lg_u32 s48, 0")
    e("  s_cbranch_scc1 L_end")
    R = 40
    def rd(w):
        for ee in range(2):
            r = R + (w*2+ee)*4
            e(f"  ds_read_b128 v[{r}:{r+3}], v7 offset:{w*2048+ee*1024}")
    for w in range(7): rd(w)
    e("  v_and_b32 v3, 3, v0")
    e("  v_lshlrev_b32 v3, 3, v3")
    e("  v_bfe_u32 v4, v0, 2, 2")
    e("  v_lshl_add_u32 v2, v4, 12, v3")
    e("  v_and_b32 v4, 15, v0")
    e("  v_lshlrev_b32 v4, 4, v4")
    e("  v_lshrrev_b32 v5, 4, v0")
    e("  v_lshl_add_u32 v1, v5, 2, v4")
    e("  v_mov_b32 v18, 1")
    e("  v_mov_b32 v19, 0")
    e("  s_lshl_b32 s49, s32, 2")
    for w in range(1, 8):
        e(f"  s_waitcnt lgkmcnt({10 if w == 1 else 14-2*w})")
        if w == 1: rd(7)
        for i in range(0, 8, 2):
            e(f"  v_pk_add_f32 v[{R+i}:{R+i+1}], v[{R+i}:{R+i+1}], v[{R+w*8+i}:{R+w*8+i+1}]")
    e(f"  buffer_store_dwordx4 v[{R}:{R+3}], v7, s[24:27], s46 offen sc1")
    e(f"  buffer_store_dwordx4 v[{R+4}:{R+7}], v7, s[24:27], s46 offen offset:1024 sc1")
    e("  s_mov_b64 exec, 0xf")
    e("  buffer_store_dwordx2 v[16:17], v3, s[24:27], s46 offen offset:2048 sc1")
    e("  s_mov_b64 exec, 1")
    e("  s_waitcnt vmcnt(0)")
    e("  buffer_atomic_add v18, v19, s[20:23], s49 offen sc0")
    e("  s_waitcnt vmcnt(0)")
    e("  s_mov_b64 exec, -1")
    e("  v_readfirstlane_b32 s50, v18")
    e("  s_cmp_lg_u32 s50, 3")
    e("  s_cbranch_scc1 L_end")
    e("  buffer_load_dwordx2 v[4:5], v2, s[24:27], s47 offen offset:2048 sc1")
    for s in range(4):
        if s > 0:
            e(f"  s_add_u32 s47, s47, 0x1000")
        for ee in range(2):
            r = R + (s*2+ee)*4
            e(f"  buffer_load_dwordx4 v[{r}:{r+3}], v7, s[24:27], s47 offen offset:{1024*ee} sc1")
    DPP = "row_mask:0xf bank_mask:0xf"
    e("  s_waitcnt vmcnt(8)")
    e(f"  v_max_f32_dpp v6, v4, v4 row_ror:4 {DPP}")
    e("  s_nop 1")
    e(f"  v_max_f32_dpp v6, v6, v6 row_ror:8 {DPP}")
    e("  v_sub_f32 v4, v4, v6")
    e("  v_exp_f32 v4, v4")
    e("  s_nop 0")
    e("  v_mul_f32 v5, v4, v5")
    e("  s_nop 1")
    e(f"  v_add_f32_dpp v6, v5, v5 row_ror:4 {DPP}")
    e("  s_nop 1")
    e(f"  v_add_f32_dpp v6, v6, v6 row_ror:8 {DPP}")
    e("  v_rcp_f32 v6, v6")
    e("  s_nop 0")
    e("  v_mul_f32 v4, v4, v6")
    e("  s_nop 1")
    for s in range(4):
        e(f"  s_waitcnt vmcnt({6-2*s})")
        for ee in range(2):
            for r in range(4):
                src = R + (s*2+ee)*4 + r
                op = "v_mul_f32_dpp" if s == 0 else "v_fmac_f32_dpp"
                e(f"  {op} v{8+ee*4+r}, v4, v{src} row_newbcast:{s*4+r} {DPP}")
    for r in range(4):
        e(f"  v_cvt_pk_bf16_f32 v{8+r}, v{8+r}, v{12+r}")
    for r in range(4):
        e(f"  buffer_store_dword v{8+r}, v1, s[16:19], s34 offen offset:{256*r}")
    e("L_end:")
    e("  s_endpgm")
    e('.section .rodata,"a"')
    e(".p2align 6")
    e(f".amdhsa_kernel {NAME}")
    e("  .amdhsa_next_free_vgpr 168")
    e("  .amdhsa_next_free_sgpr 56")
    e("  .amdhsa_accum_offset 168")
    e("  .amdhsa_group_segment_fixed_size 0")
    e("  .amdhsa_kernarg_size 48")
    e("  .amdhsa_user_sgpr_count 2")
    e("  .amdhsa_user_sgpr_kernarg_segment_ptr 1")
    e("  .amdhsa_system_sgpr_workgroup_id_x 1")
    e(".end_amdhsa_kernel")
    return "\n".join(o) + "\n"

if __name__ == "__main__":
    open("standalone__gqa_softmax__sampling.s", "w").write(gen())
    open("v1_nt.s", "w").write(gen("nt"))
```
